```python
import torch

def _softmax(x, axis=-1):
    return torch.softmax(x, dim=axis)
def _gelu(x):
    return torch.nn.functional.gelu(x, approximate="tanh")
def _silu(x):
    return torch.nn.functional.silu(x)
def _sigmoid(x):
    return torch.sigmoid(x)
def _layernorm(x, axis=-1, eps=1e-5):
    m = x.mean(dim=axis, keepdim=True)
    v = x.var(dim=axis, keepdim=True, unbiased=False)
    return (x - m) / torch.sqrt(v + eps)
def _scatter_add(tgt, idx, src, axis=0):
    return tgt.clone().index_add_(axis, idx, src)
def _segment_sum(src, seg, n):
    out = torch.zeros((n,) + src.shape[1:], dtype=src.dtype)
    return out.index_add_(0, seg, src)
def _pad(x, pw):
    flat = tuple(v for pair in reversed(pw) for v in pair)
    return torch.nn.functional.pad(x, flat)

kernel_name = 'concat_heads__mha_block_cached__mha_block_cached__near_ridge'

def setup_inputs():

    _w = (lambda a: (lambda t: t.to(torch.bfloat16) if t.is_floating_point() else t)(torch.as_tensor(a)))
    def _A_setup():
        B, Sq, D = 16, 144, 512
        H, Sk, Dh = 32, 512, 128
        return {
            "x": _w((lambda *s: torch.randn(*s, dtype=torch.bfloat16) * 0.8)(B, Sq, D)),
            "k_cache": _w((lambda *s: torch.randn(*s, dtype=torch.bfloat16) * 0.8)(B, H, Sk, Dh)),
            "v_cache": _w((lambda *s: torch.randn(*s, dtype=torch.bfloat16) * 0.05)(B, H, Sk, Dh)),
            "wq": _w((lambda *s: torch.randn(*s, dtype=torch.bfloat16) * 0.8)(D, H * Dh) * (D ** -0.5)),
            "wo": _w((lambda *s: torch.randn(*s, dtype=torch.bfloat16) * 0.05)(H * Dh, D) * ((H * Dh) ** -0.5)),
        }
    _A_in = _A_setup()

    def _B_setup():
        B, Sq, D = 16, 144, 512
        H, Sk, Dh = 32, 512, 128
        return {
            "x": _w((lambda *s: torch.randn(*s, dtype=torch.bfloat16) * 0.8)(B, Sq, D)),
            "k_cache": _w((lambda *s: torch.randn(*s, dtype=torch.bfloat16) * 0.8)(B, H, Sk, Dh)),
            "v_cache": _w((lambda *s: torch.randn(*s, dtype=torch.bfloat16) * 0.05)(B, H, Sk, Dh)),
            "wq": _w((lambda *s: torch.randn(*s, dtype=torch.bfloat16) * 0.8)(D, H * Dh) * (D ** -0.5)),
            "wo": _w((lambda *s: torch.randn(*s, dtype=torch.bfloat16) * 0.05)(H * Dh, D) * ((H * Dh) ** -0.5)),
        }
    _B_in = _B_setup()

    return {
        "A_x": _A_in["x"],
        "A_k_cache": _A_in["k_cache"],
        "A_v_cache": _A_in["v_cache"],
        "A_wq": _A_in["wq"],
        "A_wo": _A_in["wo"],
        "B_x": _B_in["x"],
        "B_k_cache": _B_in["k_cache"],
        "B_v_cache": _B_in["v_cache"],
        "B_wq": _B_in["wq"],
        "B_wo": _B_in["wo"],
    }

def reference(A_x, A_k_cache, A_v_cache, A_wq, A_wo, B_x, B_k_cache, B_v_cache, B_wq, B_wo):
    def _A_ref(x, k_cache, v_cache, wq, wo):
        B, Sq, D = x.shape
        H, Dh = 32, 128
        q = (lambda x, *d: x.permute(*d))((x @ wq).reshape(B, Sq, H, Dh), 0, 2, 1, 3)
        scores = torch.einsum("bhqd,bhkd->bhqk", q, k_cache) * (Dh ** -0.5)
        p = _softmax(scores, axis=-1)
        o = torch.einsum("bhqk,bhkd->bhqd", p, v_cache)
        return (lambda x, *d: x.permute(*d))(o, 0, 2, 1, 3).reshape(B, Sq, H * Dh) @ wo

    def _B_ref(x, k_cache, v_cache, wq, wo):
        B, Sq, D = x.shape
        H, Dh = 32, 128
        q = (lambda x, *d: x.permute(*d))((x @ wq).reshape(B, Sq, H, Dh), 0, 2, 1, 3)
        scores = torch.einsum("bhqd,bhkd->bhqk", q, k_cache) * (Dh ** -0.5)
        p = _softmax(scores, axis=-1)
        o = torch.einsum("bhqk,bhkd->bhqd", p, v_cache)
        return (lambda x, *d: x.permute(*d))(o, 0, 2, 1, 3).reshape(B, Sq, H * Dh) @ wo

    a = _A_ref(A_x, A_k_cache, A_v_cache, A_wq, A_wo)
    b = _B_ref(B_x, B_k_cache, B_v_cache, B_wq, B_wo)
    return torch.concatenate([a, b], axis=-1)
```

```python
import re

class I:
    __slots__ = ("text", "kind", "tok", "need", "cls", "note")
    def __init__(self, text, kind=None, tok=None, need=None, note=None):
        self.text = text; self.tok = tok; self.need = need; self.note = note
        self.kind = kind or classify(text)
    def __repr__(self): return self.text

def classify(t):
    op = t.split()[0]
    if op.endswith(":"): return "label"
    if op.startswith("v_mfma"): return "mfma"
    if op.startswith(("v_exp", "v_rcp", "v_log", "v_rsq")): return "trans"
    if op.startswith("v_"): return "valu"
    if op.startswith("ds_"): return "ds"
    if op.startswith(("buffer_", "global_")): return "vmem"
    if op in ("WAITL", "WAITV"): return "wait"
    if op.startswith("."): return "dir"
    return "salu"

class Tok:
    n = 0
    def __init__(self, name="", cnt=None):
        Tok.n += 1; self.id = Tok.n; self.name = name; self.cnt = cnt
    def __repr__(self): return f"<{self.name}#{self.id}>"

class F:
    def __init__(self, ins, earliest=-1, deadline=10**9, hard=None, slots=None, stream=None, delay=0, after=None):
        self.delay = delay; self.after = after
        self.ins = ins if isinstance(ins, list) else [ins]
        self.earliest = earliest; self.deadline = deadline
        self.hard = hard if hard is not None else 10**9
        k = self.ins[0].kind
        self.kind = k
        if slots is None:
            slots = sum({"trans": 2, "valu": 1, "ds": 1, "vmem": 1}.get(i.kind, 0) for i in self.ins)
        self.slots = slots; self.stream = stream; self.placed = None

def schedule(mf, streams, cap=2, verbose=False, name=""):
    n = len(mf)
    seen = set(); waitgap = set()
    for k, m in enumerate(mf):
        for t in (m.need or []):
            if t.id not in seen:
                seen.add(t.id); waitgap.add(k - 1)
    for st in streams:
        for f in st: f.stream = st
    heads = [0] * len(streams)
    gaps = {}
    over = 0
    for g in range(-1, n):
        budget = cap if g >= 0 else 10**6
        scal_free = 0 if g in waitgap else 1
        chosen = []
        last = (g == n - 1)
        while True:
            best = None
            for si, st in enumerate(streams):
                if heads[si] >= len(st): continue
                f = st[heads[si]]
                if f.earliest > g and not last: continue
                if f.after is not None and (f.after.placed is None or (f.after.placed >= g and not last)): continue
                forced = last or any(x.hard <= g for x in st[heads[si]:heads[si] + 24])
                if g == -1 and not forced and f.deadline > 0: continue
                if f.delay and heads[si] > 0 and st[heads[si] - 1].placed + f.delay > g and not forced: continue
                cost = f.slots if f.slots else (0 if scal_free else 1)
                if cost > budget and not forced: continue
                key = (0 if forced else 1, f.deadline)
                if best is None or key < best[0]: best = (key, si, f, cost)
            if best is None: break
            _, si, f, cost = best
            if f.slots == 0 and scal_free: scal_free = 0
            budget -= cost
            f.placed = g; chosen.append(f); heads[si] += 1
        if budget < 0 and g >= 0 and not last: over += -budget
        gaps[g] = chosen
    assert all(heads[i] == len(st) for i, st in enumerate(streams)), (name, "unplaced fillers")
    out = []
    def emit_gap(g):
        ch = gaps[g]
        rank = {"salu": 0, "wait": 0, "ds": 1, "vmem": 1, "valu": 2, "trans": 2}
        order = sorted(range(len(ch)), key=lambda i: rank[ch[i].kind])
        res = []; done = set()
        for i in order:
            for j in range(i):
                if j not in done and ch[j].stream is ch[i].stream and ch[i].stream is not None:
                    res.append(j); done.add(j)
            if i not in done:
                res.append(i); done.add(i)
        return [x for i in res for x in ch[i].ins]
    issued = {}
    body = []
    body += emit_gap(-1)
    for k, m in enumerate(mf):
        body.append(m)
        body += emit_gap(k)
    pos = {}
    for idx, ins in enumerate(body):
        if ins.tok is not None: pos[ins.tok.id] = idx
    mpos = [i for i, x in enumerate(body) if x.kind == "mfma"]
    inserts = {}
    seen = set()
    for k, m in enumerate(mf):
        new = [t for t in (m.need or []) if t.id not in seen]
        if not new: continue
        for t in new: seen.add(t.id)
        lastp = max(pos.get(t.id, -1) for t in new)
        assert lastp < mpos[k], (name, "operand read issued after its MFMA", k, m.text)
        if k > 0 and lastp < mpos[k - 1]:
            inserts.setdefault(mpos[k - 1] + 1, []).extend(new)
        else:
            inserts.setdefault(mpos[k], []).extend(new)
    for idx, ins in enumerate(body + [None]):
        if idx in inserts: out.append(I("WAITL", need=inserts[idx]))
        if ins is not None: out.append(ins)
    if verbose:
        print(f"[sched {name}] mfma={n} overflow_slots={over} instrs={len(out)}")
    return out

def resolve_waits(trace):
    best = {}
    lq = []; vq = []
    ldone = -1; vdone = -1
    lpos = {}; vpos = {}; vcount = {}
    for ins in trace:
        if ins.kind == "ds":
            lq.append(ins.tok);
            if ins.tok is not None: lpos[ins.tok.id] = len(lq) - 1
        elif ins.kind == "vmem":
            vq.append(ins.tok)
            if ins.tok is not None:
                vpos[ins.tok.id] = len(vq) - 1; vcount[ins.tok.id] = vcount.get(ins.tok.id, 0) + 1
        elif ins.kind == "wait":
            isl = ins.text.startswith("WAITL") or ins.note == "L"
            ins.note = "L" if isl else "V"
            q, p = (lq, lpos) if isl else (vq, vpos)
            if ins.need == "all": need = len(q) - 1
            else:
                missing = [t for t in ins.need if t.id not in p]
                assert not missing, ("wait for a token never issued", missing)
                need = max(p[t.id] for t in ins.need)
                if not isl:
                    for t in ins.need:
                        assert t.cnt is None or vcount[t.id] == t.cnt, ("group not fully issued at its wait", t, vcount[t.id])
                        vcount[t.id] = 0
            done = ldone if isl else vdone
            if need > done:
                cnt = min(len(q) - 1 - need, 15 if isl else 63)
                best[id(ins)] = min(best.get(id(ins), 99), cnt)
            if id(ins) in best:
                nd = len(q) - 1 - best[id(ins)]
                if isl: ldone = max(ldone, nd)
                else: vdone = max(vdone, nd)
        elif ins.text.startswith("s_waitcnt"):
            if "lgkmcnt(0)" in ins.text: ldone = len(lq) - 1
            if "vmcnt(0)" in ins.text: vdone = len(vq) - 1
    for ins in trace:
        if ins.kind == "wait":
            if id(ins) in best:
                ins.text = f"s_waitcnt {'lgkmcnt' if ins.note == 'L' else 'vmcnt'}({best[id(ins)]})"
            else:
                ins.text = ""

REG = re.compile(r"\b([va])(\d+)\b|\b([va])\[(\d+):(\d+)\]")
def regs(s):
    r = set()
    for m in REG.finditer(s):
        if m.group(1): r.add((m.group(1), int(m.group(2))))
        else: r.update((m.group(3), i) for i in range(int(m.group(4)), int(m.group(5)) + 1))
    return r

def rw(ins):
    t = ins.text
    op, _, rest = t.partition(" ")
    ops = [x.strip() for x in rest.split(",")]
    if ins.kind == "mfma":
        return regs(ops[0]), regs(ops[1]) | regs(ops[2]), regs(ops[3])
    if ins.kind in ("valu", "trans"):
        if op.startswith("v_cmp") or op.startswith("v_readfirstlane") or op.startswith("v_readlane"):
            return set(), regs(",".join(ops[1:])), set()
        if op.startswith("v_permlane"):
            return regs(rest), regs(rest), set()
        w = regs(ops[0]); r = regs(",".join(ops[1:]))
        if op.startswith(("v_fmac", "v_dot2c")): r |= w
        return w, r, set()
    if ins.kind == "ds":
        if op.startswith("ds_read"): return regs(ops[0]), regs(",".join(ops[1:])), set()
        return set(), regs(rest), set()
    if ins.kind == "vmem":
        if "load" in op and " lds" not in t: return regs(ops[0]), regs(",".join(ops[1:])), set()
        if "atomic" in op and "sc0" in t: return regs(ops[0]), regs(rest), set()
        return set(), regs(rest), set()
    return set(), set(), set()

def states(ins):
    if ins.kind in ("label", "dir") or not ins.text: return 0
    if ins.text.startswith("s_nop"): return int(ins.text.split()[1]) + 1
    return 1

def check_hazards(trace, fix=None):
    probs = []
    info = [rw(i) if i.text else (set(), set(), set()) for i in trace]
    for k, c in enumerate(trace):
        if not c.text or c.kind in ("label", "dir", "wait"): continue
        cw, cr, cc = info[k]
        dist = 0
        for j in range(k - 1, max(-1, k - 24), -1):
            p = trace[j]
            pw, pr, pc = info[j]
            need = 0; why = ""
            if p.kind == "mfma":
                if c.kind == "mfma":
                    if pw & cr: need, why = 8, "mfma D -> mfma A/B"
                    elif (pw & cc) and pw != cc: need, why = 6, "mfma D -> overlapping C"
                elif c.kind in ("valu", "trans", "ds", "vmem"):
                    if pw & (cr | cw): need, why = 8, "mfma D -> valu/mem"
                    elif c.kind in ("valu", "trans") and (pc & cw): need, why = 3, "mfma C WAR"
            elif p.kind in ("valu", "trans"):
                if c.kind == "mfma" and pw & (cr | cc): need, why = 2, "valu -> mfma"
                elif c.text.startswith("v_permlane") and pw & cr: need, why = 2, "valu -> permlane"
                elif c.text.startswith(("v_readfirstlane", "v_readlane")) and pw & cr: need, why = 1, "valu -> readlane"
                elif p.kind == "trans" and c.kind == "valu" and pw & cr: need, why = 1, "trans -> valu"
                elif p.text.startswith("v_cmp") and c.text.startswith("v_cndmask"): need, why = 2, "cmp -> cndmask"
                elif p.text.startswith("v_readfirstlane") and c.kind == "vmem":
                    d = p.text.split()[1].rstrip(",")
                    if re.search(r"\b" + d + r"\b", c.text): need, why = 5, "readfirstlane -> vmem sgpr"
                elif p.text.startswith("v_readfirstlane") and c.kind in ("valu", "trans"):
                    d = p.text.split()[1].rstrip(",")
                    if re.search(r"\b" + d + r"\b", c.text): need, why = 2, "readfirstlane -> valu sgpr"
            elif p.kind == "vmem" and "store" in p.text and ("x4" in p.text or "x3" in p.text):
                data = regs(p.text.split(",")[0])
                if data & cw: need, why = 2, "wide store WAR"
            elif p.kind == "salu" and re.match(r"s_\w+ m0,", p.text) and c.kind == "vmem" and " lds" in c.text:
                need, why = 1, "m0 -> lds dma"
            if need > dist:
                probs.append((k, need - dist, f"{why}: [{p.text}] -> [{c.text}]"))
            dist += states(p)
            if dist >= 8: break
    return probs
```

```python
import sys
from sched import *

NAME = "concat_heads__mha_block_cached__mha_block_cached__near_ridge"
SLOT = 8704; GRP = 4 * SLOT
POS = [0, 2 * GRP, GRP, 3 * GRP]
X9 = 4 * GRP; X9S = 1040
Q9A = X9 + 16 * X9S
L9A = Q9A + 4096
LDS_BYTES = L9A + 1024
PART = 18432
PART_BYTES = 32 * 8 * 8 * PART
CSCALE = 0x3e0293ee
import struct, math
CSCALE = struct.unpack("<I", struct.pack("<f", math.log2(math.e) / math.sqrt(128.0)))[0]

OPT = dict(lat=6, dma_gap=5, verbose=True, dbg=None)

def vr(a, n=1): return f"v{a}" if n == 1 else f"v[{a}:{a+n-1}]"
def ar(a, n=1): return f"a{a}" if n == 1 else f"a[{a}:{a+n-1}]"
OACC = lambda t, qt: 0 + (t * 2 + qt) * 4
QF   = lambda qt, u: 64 + (qt * 4 + u) * 4
SB   = lambda b, qt: 96 + (b * 2 + qt) * 8
S9   = 128
NEGM = lambda q: 136 + 4 * q
FR   = lambda i: 148 + 4 * (i % 8)
Q9F  = lambda u: 180 + 4 * u
ONES = 196
LACC = lambda q: 200 + 4 * q
AK   = lambda j: 212 + j
AV   = lambda j: 216 + j
AWQ  = lambda h: 220 + h
AWQ9 = lambda h: 222 + h
AX9, VKV0, VKV1, VW, VTOUCH = 224, 225, 226, 227, 228
O9S  = lambda h: 232 + 4 * h
T0   = 248
VDUM = 229
VL16 = 230
VL4  = 231
XF   = lambda qt, ks: (qt * 16 + ks) * 4
OST  = lambda h, qt, u: 128 + h * 32 + (qt * 4 + u) * 4
O9A  = lambda t: 224 + 4 * t
O9F  = lambda kk: 4 * kk

SX, SW, SK, SV, SWO, SWS, SWO2 = 8, 12, 16, 20, 24, 28, 32
sWAVE, sWSL, sR, sKB, sT, sRETRY = 36, 37, 38, 39, 40, 41
sWG = lambda c: 44 + c
sWBS, sWM, sWM4, sC, sLO, sHI, sB, sHG, sPAIR = 48, 49, 50, 51, 52, 53, 54, 55, 56
sSL = lambda i: 57 + i
sST = lambda i: 60 + i
sIT, sNAN, sST9 = 62, 63, 64
def srd(s): return f"s[{s}:{s+3}]"

def L(text):
    return [I(x.strip()) for x in text.strip().split("\n") if x.strip()]
def mfma(d, a, b, c, need=None):
    return I(f"v_mfma_f32_16x16x32_bf16 {d}, {a}, {b}, {c}", need=need)

def dma_kv(srdn, c, pos, flag="nt"):
    tok = Tok("kv", 8); items = []
    for i in range(8):
        pre = [f"s_add_u32 s{sT}, s{sKB}, {c*32768}", f"s_add_u32 m0, s{sWSL}, {POS[pos]}"] if i == 0 else \
              [f"s_add_u32 m0, m0, {4128 if i == 4 else 32}"]
        for p in pre: items.append(I(p))
        off = f" offset:{1024*(i&3)}" if i & 3 else ""
        items.append(I(f"buffer_load_dwordx4 v{VKV0 if i < 4 else VKV1}, {srd(srdn)}, s{sT} offen{off} {flag} lds", tok=tok))
    return items, tok

def dma_w(c, pos):
    tok = Tok("w", 8); items = []
    for b in range(8):
        if b == 0:
            items += [I(f"s_mov_b32 s{sT}, s{sWG(c)}"), I(f"s_add_u32 m0, s{sWSL}, {POS[pos]}")]
        else:
            items += [I(f"s_add_u32 s{sT}, s{sT}, s{sWBS}"), I(f"s_add_u32 m0, m0, s{sWM4 if b == 4 else sWM}")]
        items.append(I(f"buffer_load_dwordx4 v{VW}, {srd(SW)}, s{sT} offen lds", tok=tok))
    return items, tok

def dma_wo(srdn, ssl, m, pos):
    tok = Tok("wo", 8); items = []
    for b in range(8):
        if b == 0:
            items += [I(f"s_add_u32 s{sT}, s{ssl}, {m*256*1024}"), I(f"s_add_u32 m0, s{sWSL}, {POS[pos]}")]
        elif b == 4:
            items += [I(f"s_add_u32 s{sT}, s{sT}, 4096"), I(f"s_add_u32 m0, m0, {4128}")]
        else:
            items += [I(f"s_add_u32 m0, m0, 32")]
        off = f" offset:{1024*(b&3)}" if b & 3 else ""
        items.append(I(f"buffer_load_dwordx4 v{VW}, {srd(srdn)}, s{sT} offen{off} lds", tok=tok))
    return items, tok

def dma_stream(items, after, gap, base):
    st = []; first = True; n = 0
    for it in items:
        dl = base + gap * (n + 1)
        if it.kind == "vmem":
            st.append(F(it, delay=1, deadline=dl, hard=dl + 12)); n += 1
        else:
            st.append(F(it, after=after if first else None, delay=0 if first else gap - 2 if st[-1].kind == "vmem" else 0, deadline=dl - 2))
        first = False
    return st

class Ring:
    def __init__(self): self.n = 0; self.last = [-1] * 8
    def get(self):
        i = self.n % 8; self.n += 1
        return i, self.last[i]
    def used(self, i, k): self.last[i] = k

class Ctx: pass

def sync_item(vtoks, ltoks="prev", delay=0):
    ins = []
    if ltoks is not None: ins.append(I("WAITL", need=ltoks))
    if vtoks: ins.append(I("WAITV", need=vtoks))
    ins.append(I("s_barrier"))
    return F(ins, slots=1, delay=delay, deadline=-1)

def qproj(cx):
    lat = OPT["lat"]
    mf = []; ds = []; dm = []; ring = Ring()
    def frag(reads):
        i, e = ring.get(); tk = Tok("f")
        k0 = len(mf)
        for n, r in enumerate(reads(FR(i))):
            ds.append(F(I(r, tok=tk), earliest=e, deadline=k0 - lat, hard=k0 - 1))
        return i, tk
    lasttok = None
    for c in range(4):
        s = sync_item([cx.w[c]] if c != 2 and c != 3 else [cx.wl[c]], ltoks=[lasttok] if lasttok else None, delay=5 if c else 0)
        s.hard = len(mf) - 2 if c else -1
        s.deadline = len(mf) - lat - 6 if c else -1
        ds.append(s)
        if c == 0:
            it2, _ = cx.wl_items[2], None
            dm += dma_stream(cx.wl_items[2] + cx.wl_items[3], s, 3, 0)
        else:
            src = [(SK, 0, 0), (SV, 0, 1), (SK, 1, 2)][c - 1]
            items, tok = dma_kv(*src)
            cx.kv[("K" if src[0] == SK else "V", src[1])] = tok
            dm += dma_stream(items, s, OPT["dma_gap"], len(mf))
        a, a9 = AWQ(0 if c in (0, 2) else 1), AWQ9(0 if c in (0, 2) else 1)
        gb = GRP if c >= 2 else 0
        for tile in range(4):
            kk = 4 * c + tile; base = gb + tile * SLOT
            for t in range(8):
                o = base + (t >> 1) * 64 + (t & 1) * 8
                i, tk = frag(lambda r: [f"ds_read_b64_tr_b16 {vr(r,2)}, v{a} offset:{o}", f"ds_read_b64_tr_b16 {vr(r+2,2)}, v{a} offset:{o+512}"])
                for qt in range(2):
                    d = vr(OACC(t, qt), 4)
                    mf.append(mfma(d, vr(FR(i), 4), ar(XF(qt, kk), 4), d if kk else "0", need=[tk]))
                ring.used(i, len(mf) - 1)
            ix, tx = frag(lambda r: [f"ds_read_b64 {vr(r,2)}, v{AX9} offset:{kk*64}", f"ds_read_b64 {vr(r+2,2)}, v{AX9} offset:{kk*64+32}"])
            for t in range(2):
                o = base + t * 8
                i, tk = frag(lambda r: [f"ds_read_b64_tr_b16 {vr(r,2)}, v{a9} offset:{o}", f"ds_read_b64_tr_b16 {vr(r+2,2)}, v{a9} offset:{o+512}"])
                d = vr(S9 + 4 * t, 4)
                mf.append(mfma(d, vr(FR(i), 4), vr(FR(ix), 4), d if kk else "0", need=[tk, tx]))
                ring.used(i, len(mf) - 1); ring.used(ix, len(mf) - 1)
                lasttok = tk
    out = schedule(mf, [ds, dm], verbose=OPT["verbose"], name="qproj")
    e = ["s_nop 7"]
    for j in range(8): e.append(f"v_mul_f32 v{S9+j}, s{sC}, v{S9+j}")
    for j in range(4): e.append(f"v_cvt_pk_bf16_f32 v{S9+j}, v{S9+2*j}, v{S9+2*j+1}")
    e.append(f"ds_write_b128 v{VL16}, {vr(S9,4)} offset:0")
    for qt in range(2):
        for u in range(4):
            for h in range(2):
                a0 = OACC(2 * u + h, qt)
                for j in range(4): e.append(f"v_mul_f32 v{a0+j}, s{sC}, v{a0+j}")
                for j in range(2): e.append(f"v_cvt_pk_bf16_f32 v{QF(qt,u)+2*h+j}, v{a0+2*j}, v{a0+2*j+1}")
    e.append("s_waitcnt lgkmcnt(0)")
    return out + L("\n".join(e))

def attention(cx):
    lat = OPT["lat"]
    mf = []; ds = []; va = []; dm = []; ring = Ring()
    def frag(reads, slack=0):
        i, e = ring.get(); tk = Tok("f")
        k0 = len(mf)
        for n, r in enumerate(reads(FR(i))):
            ds.append(F(I(r, tok=tk), earliest=e, deadline=k0 - lat, hard=k0 - 1))
        return i, tk
    lastK = [None]; lastV = [None]; since = {}
    q9t = Tok("q9")
    def add_sync(vt, lt, issue):
        s = sync_item(vt, ltoks=lt)
        k0 = len(mf)
        s.deadline = k0 - lat - 1; s.hard = k0 - 2
        ds.append(s)
        if issue is not None:
            items = issue()
            dm.extend(dma_stream(items, s, OPT["dma_gap"], k0))
        return s
    def issue_kv(w, c, pos):
        def f():
            items, tok = dma_kv(SK if w == "K" else SV, c, pos); cx.kv[(w, c)] = tok
            return items
        return f
    def issue_w(c, pos):
        def f():
            items, tok = dma_w(c, pos); cx.wnext[c] = tok
            return items
        return f
    pdone = {}
    sm = {}
    def qk(i):
        c, j = i >> 2, i & 3; b = i & 1; own = (j == 0)
        if j == 0:
            if c == 0:
                s = add_sync([cx.kv[("K", 0)]], None, issue_kv("V", 1, 3))
                s.hard = -1; s.deadline = -1
                for u in range(4):
                    ds.append(F(I(f"ds_read_b128 {vr(Q9F(u),4)}, v{T0} offset:{u*1024}", tok=q9t), deadline=-1, hard=0))
            else:
                add_sync([cx.kv[("K", c)]], [lastK[0]], issue_kv("K", c + 1, 0 if c == 1 else 2) if c < 3 else issue_w(0, 0))
        gb = GRP if c & 1 else 0
        fin = {}
        for tau in range(2):
            for ks in range(4):
                o = gb + tau * 512 + ks * 64
                fi, tk = frag(lambda r: [f"ds_read_b128 {vr(r,4)}, v{AK(j)} offset:{o}"])
                lastK[0] = tk
                for qt in range(3 if own else 2):
                    d = vr((SB(b, qt) if qt < 2 else S9) + 4 * tau, 4)
                    bq = vr(QF(qt, ks), 4) if qt < 2 else vr(Q9F(ks), 4)
                    mf.append(mfma(d, vr(FR(fi), 4), bq, d if ks else vr(NEGM(qt), 4), need=[tk] + ([q9t] if qt == 2 else [])))
                    fin[(tau, qt)] = len(mf) - 1
                ring.used(fi, len(mf) - 1)
        seq = []
        for tau in range(2):
            for qt in range(3 if own else 2):
                s0 = SB(b, qt) if qt < 2 else S9
                e0 = fin[(tau, qt)] + 4
                for r in range(4): seq.append((f"v_exp_f32 v{s0+4*tau+r}, v{s0+4*tau+r}", e0, qt))
                for r in range(2): seq.append((f"v_cvt_pk_bf16_f32 v{s0+2*tau+r}, v{s0+4*tau+2*r}, v{s0+4*tau+2*r+1}", e0, qt))
        sm[i] = seq
    def pv(i):
        c, j = i >> 2, i & 3; b = i & 1; own = (j == 0)
        k0 = len(mf)
        n = len(sm[i])
        for x, (text, e0, qt) in enumerate(sm[i]):
            va.append(F(I(text), earliest=e0, deadline=k0 - 2 - (n - x), hard=k0 - 2))
        for qt in range(3 if own else 2):
            d = vr(LACC(qt), 4); p = vr(SB(b, qt) if qt < 2 else S9, 4)
            mf.append(mfma(d, vr(ONES, 4), p, d if i else "0"))
        if j == 0:
            if c == 0: add_sync([cx.kv[("V", 0)]], None, None)
            else: add_sync([cx.kv[("V", c)]], [lastV[0]], issue_kv("V", c + 1, 1 if c == 1 else 3) if c < 3 else issue_w(1, 1))
        gb = GRP if c & 1 else 0
        for t in range(8):
            o = gb + t * 32
            fi, tk = frag(lambda r: [f"ds_read_b64_tr_b16 {vr(r,2)}, v{AV(j)} offset:{o}", f"ds_read_b64_tr_b16 {vr(r+2,2)}, v{AV(j)} offset:{o+512}"])
            lastV[0] = tk
            for qt in range(3 if own else 2):
                d = vr(OACC(t, qt), 4) if qt < 2 else ar(O9A(t), 4)
                p = vr(SB(b, qt) if qt < 2 else S9, 4)
                mf.append(mfma(d, vr(FR(fi), 4), p, d if i else "0", need=[tk]))
            ring.used(fi, len(mf) - 1)
    qk(0)
    for i in range(15):
        qk(i + 1)
        if i == 14:
            s = sync_item(None, ltoks=[lastK[0]], delay=0); s.deadline = len(mf) + 6; s.earliest = len(mf) - 1; s.hard = len(mf) + 20
            cx.kend = s; pend = s
        pv(i)
        if i == 14:
            idx = len(ds) - 10
            ds.insert(idx, pend); pend.deadline = ds[idx + 1].deadline; pend.hard = ds[idx + 1].hard; pend.earliest = -1
    k0 = len(mf)
    pv(15)
    wr = []
    for t in range(8):
        wr.append(F(I(f"ds_write_b128 v{T0+1}, {ar(O9A(t),4)} offset:{t*1024}"), after=cx.kend if t == 0 else None, deadline=10**7, slots=2))
    out = schedule(mf, [ds, va, dm, wr], verbose=OPT["verbose"], name="attn")
    return out

def o_epilogue(cx):
    e = ["s_nop 7"]
    e += [f"v_cmp_lt_f32 vcc, s{sLO}, v{LACC(0)}", f"v_cmp_gt_f32 s[66:67], s{sHI}, v{LACC(0)}", "s_and_b64 s[68:69], vcc, s[66:67]",
          f"v_cmp_lt_f32 vcc, s{sLO}, v{LACC(1)}", f"v_cmp_gt_f32 s[66:67], s{sHI}, v{LACC(1)}", "s_and_b64 s[68:69], s[68:69], vcc",
          "s_and_b64 vcc, s[68:69], s[66:67]", f"v_mov_b32 v{T0+2}, s{sNAN}", f"v_rcp_f32 v{T0+3}, v{LACC(0)}",
          f"v_cndmask_b32 v{T0+2}, v{T0+2}, v{LACC(2)}, vcc", f"v_rcp_f32 v{T0+4}, v{LACC(1)}",
          f"ds_write_b32 v{VL4}, v{T0+2}", "s_waitcnt lgkmcnt(0)", "s_barrier"]
    for w in range(4):
        for t in range(2):
            e.append(f"ds_read_b128 {vr(FR(2*w+t),4)}, v{T0+5} offset:{w*8192+t*1024}")
    for w in range(4):
        e.append(f"ds_read_b32 v{LACC(2)+w}, v{T0+6} offset:{w*256}")
    for qt in range(2):
        for u in range(4):
            dst = 96 + (qt * 4 + u) * 4
            for h in range(2):
                a0 = OACC(2 * u + h, qt)
                for j in range(4): e.append(f"v_mul_f32 v{a0+j}, v{T0+3+qt}, v{a0+j}")
                for j in range(2): e.append(f"v_cvt_pk_bf16_f32 v{dst+2*h+j}, v{a0+2*j}, v{a0+2*j+1}")
    e.append("s_waitcnt lgkmcnt(0)")
    l9 = LACC(2)
    e += [f"v_add_f32 v{l9}, v{l9}, v{l9+1}", f"v_add_f32 v{l9+2}, v{l9+2}, v{l9+3}", f"v_add_f32 v{l9}, v{l9}, v{l9+2}"]
    for w in range(1, 4):
        for j in range(8): e.append(f"v_add_f32 v{FR(0)+j}, v{FR(0)+j}, v{FR(2*w)+j}")
    e += [f"v_rcp_f32 v{T0+3}, v{l9}", f"v_cmp_lt_f32 vcc, s{sLO}, v{l9}", f"v_cmp_gt_f32 s[66:67], s{sHI}, v{l9}", "s_and_b64 vcc, vcc, s[66:67]"]
    for j in range(8): e.append(f"v_mul_f32 v{FR(0)+j}, v{T0+3}, v{FR(0)+j}")
    for j in range(4): e.append(f"v_cvt_pk_bf16_f32 v{O9S(3)+j}, v{FR(0)+2*j}, v{FR(0)+2*j+1}")
    e += ["s_cmp_eq_u64 vcc, exec", "s_cbranch_scc1 L_ok", f"s_cmp_eq_u32 s{sRETRY}, 0", "s_cbranch_scc1 L_retry", "L_ok:",
          f"s_cmp_eq_u32 s{sRETRY}, 0", "s_cbranch_scc0 L_unretry", "L_ok2:"]
    return L("\n".join(e))

def stash_blocks():
    e = []
    for h in range(3):
        e.append(f"L_stash{h}:")
        for j in range(32): e.append(f"v_accvgpr_write_b32 a{OST(h,0,0)+j}, v{96+j}")
        for j in range(4): e.append(f"v_mov_b32 v{O9S(h)+j}, v{O9S(3)+j}")
        e.append("s_branch L_head")
    return L("\n".join(e))

def next_w_params():
    e = f"""
    s_cmp_eq_u32 s{sR}, 3
    s_cbranch_scc1 L_nw_o
    s_add_u32 s{sT}, s{sR}, 1
    s_lshl_b32 s{sT}, s{sT}, 8
    s_lshl_b32 s{sWG(0)}, s{sWAVE}, 18
    s_add_u32 s{sWG(0)}, s{sWG(0)}, s{sT}
    s_add_u32 s{sWG(1)}, s{sWG(0)}, {128*8192}
    s_add_u32 s{sWG(2)}, s{sWG(0)}, {256*8192}
    s_add_u32 s{sWG(3)}, s{sWG(0)}, {384*8192}
    s_branch L_nw_done
    L_nw_o:
    s_mov_b32 s{SW}, s{SWO}
    s_mov_b32 s{SW+1}, s{SWO+1}
    s_mov_b32 s{SW+2}, s{SWO+2}
    s_mov_b32 s{sWBS}, 1024
    s_mov_b32 s{sWM}, 1056
    s_mov_b32 s{sWM4}, 1056
    s_mov_b32 s{sWG(0)}, s{sSL(0)}
    s_add_u32 s{sWG(1)}, s{sSL(0)}, {256*1024}
    s_mov_b32 s{sWG(2)}, s{sSL(1)}
    s_mov_b32 s{sT}, 0
    v_lshrrev_b32 v{VW}, 7, v{VKV0}
    v_lshlrev_b32 v{VW}, 13, v{VW}
    v_and_b32 v{VTOUCH}, 0x70, v{VKV0}
    v_or_b32 v{VW}, v{VW}, v{VTOUCH}
    v_lshrrev_b32 v{VTOUCH}, 4, v{VKV0}
    v_lshlrev_b32 v{VTOUCH}, 7, v{VTOUCH}
    s_lshl_b32 s65, s{sB}, 2
    s_add_u32 s65, s65, s{sWAVE}
    s_lshl_b32 s65, s65, 13
    v_add_u32 v{VTOUCH}, s65, v{VTOUCH}
    L_nw_done:
    buffer_load_dword v{VDUM}, v{VTOUCH}, {srd(SW)}, s{sT} offen
    """
    return L(e)

def retry_block():
    e = [ "L_retry:", "s_waitcnt vmcnt(0) lgkmcnt(0)", "s_barrier", f"s_mov_b32 s{sRETRY}, 1", "s_mov_b32 s70, 0"]
    for q in range(3): e.append(f"v_mov_b32 v{T0+2+q}, 0xff800000")
    e.append("L_mx_chunk:")
    e += [f"s_lshl_b32 s71, s70, 15", f"s_add_u32 s{sT}, s{sKB}, s71", f"s_add_u32 m0, s{sWSL}, {POS[0]}"]
    for i in range(8):
        if i: e.append(f"s_add_u32 m0, m0, {4128 if i == 4 else 32}")
        e.append("s_nop 0")
        off = f" offset:{1024*(i&3)}" if i & 3 else ""
        e.append(f"buffer_load_dwordx4 v{VKV0 if i < 4 else VKV1}, {srd(SK)}, s{sT} offen{off} lds")
    e += ["s_waitcnt vmcnt(0)", "s_barrier"]
    for j in range(4):
        for tau in range(2):
            for ks in range(4): e.append(f"ds_read_b128 {vr(FR(ks),4)}, v{AK(j)} offset:{tau*512+ks*64}")
            e.append("s_waitcnt lgkmcnt(0)")
            for q in range(3):
                d = vr(SB(0, 0) + 4 * q, 4)
                for ks in range(4):
                    bq = vr(QF(q, ks), 4) if q < 2 else vr(Q9F(ks), 4)
                    e.append(f"v_mfma_f32_16x16x32_bf16 {d}, {vr(FR(ks),4)}, {bq}, {d if ks else 0}")
            e.append("s_nop 7")
            for q in range(3):
                s0 = SB(0, 0) + 4 * q
                e += [f"v_max3_f32 v{T0+2+q}, v{s0}, v{s0+1}, v{T0+2+q}", f"v_max3_f32 v{T0+2+q}, v{s0+2}, v{s0+3}, v{T0+2+q}"]
            e.append("s_nop 3")
    e += ["s_barrier", "s_add_u32 s70, s70, 1", "s_cmp_lt_u32 s70, 4", "s_cbranch_scc1 L_mx_chunk"]
    for q in range(3):
        m = T0 + 2 + q; t = SB(0, 0)
        e += [f"v_mov_b32 v{t}, v{m}", "s_nop 1", f"v_permlane32_swap_b32 v{t}, v{m}", "s_nop 1", f"v_max_f32 v{m}, v{m}, v{t}",
              f"v_mov_b32 v{t}, v{m}", "s_nop 1", f"v_permlane16_swap_b32 v{t}, v{m}", "s_nop 1", f"v_max_f32 v{m}, v{m}, v{t}"]
        for j in range(4): e.append(f"v_sub_f32 v{NEGM(q)+j}, 0, v{m}")
    out = L("\n".join(e))
    for (s, c, p) in [(SK, 0, 0), (SV, 0, 1), (SK, 1, 2)]:
        items, _ = dma_kv(s, c, p)
        for it in items:
            if it.kind == "vmem": out.append(I("s_nop 0"))
            out.append(it)
    out += L("s_waitcnt vmcnt(0)\ns_branch L_attn")
    e = ["L_unretry:", f"s_mov_b32 s{sRETRY}, 0"] + [f"v_mov_b32 v{NEGM(0)+j}, 0" for j in range(12)] + ["s_branch L_ok2"]
    return out + L("\n".join(e))

def final_body(cx):
    lat = OPT["lat"]
    mf = []; ds = []; dm = []; va = []; st = []; ring = Ring()
    acc = lambda s, t, qt: 32 * s + (t * 2 + qt) * 4
    acc9 = lambda s: S9 + 4 * s
    def bfrag(qt, kk):
        h, u = kk >> 2, kk & 3
        return ar(OST(h, qt, u), 4) if h < 3 else vr(96 + (qt * 4 + u) * 4, 4)
    def frag(reads):
        i, e = ring.get(); tk = Tok("f"); k0 = len(mf)
        for r in reads(FR(i)):
            ds.append(F(I(r, tok=tk), earliest=e, deadline=k0 - lat, hard=k0 - 1))
        return i, tk
    def epi(s, k0):
        pk = 64 + 16 * s
        for e in range(4):
            qt, tp = e >> 1, e & 1
            for h in range(2):
                a0 = acc(s, 2 * tp + h, qt)
                for j in range(2):
                    va.append(F(I(f"v_cvt_pk_bf16_f32 v{pk+4*e+2*h+j}, v{a0+2*j}, v{a0+2*j+1}"), earliest=k0 + 3, deadline=k0 + 40, hard=k0 + 120))
            va.append(F(I(f"buffer_store_dwordx4 {vr(pk+4*e,4)}, v{VKV0}, {srd(SWS)}, s{sST(s)} offen offset:{e*1024}" + cx.stflag), deadline=k0 + 40, hard=k0 + 125, delay=2))
        for j in range(2):
            va.append(F(I(f"v_cvt_pk_bf16_f32 v{T0+2+2*s+j}, v{acc9(s)+2*j}, v{acc9(s)+2*j+1}"), deadline=k0 + 40, hard=k0 + 126))
        va.append(F([I(f"s_add_u32 s{sST9}, s{sST(s)}, s65"), I(f"buffer_store_dwordx2 {vr(T0+2+2*s,2)}, v{VL4}, {srd(SWS)}, s{sST9} offen" + cx.stflag)], deadline=k0 + 40, hard=k0 + 127, slots=2, delay=2))
    lasttok = cx.flast
    for g in range(4):
        s, m = g >> 1, g & 1
        sy = sync_item([cx.fw[g]], ltoks=[lasttok] if g else None, delay=5 if g else 0)
        sy.hard = len(mf) - 2 if g else -1; sy.deadline = len(mf) - lat - 6 if g else -1
        ds.append(sy)
        nxt = [(SWO, sSL(0), 1, 3), (SWO2, sSL(1), 0, 0), (SWO2, sSL(1), 1, 1), (SWO2, sSL(2), 0, 2)][g]
        items, tok = cx.fitems[g]
        dm += dma_stream(items, sy, OPT["dma_gap"], len(mf))
        if m == 0: epi(1 - s, len(mf) - 1)
        gb = GRP if g >= 2 else 0
        for tile in range(4):
            for ks in range(2):
                kk = 8 * m + 2 * tile + ks
                for t in range(4):
                    a = (AK if g in (0, 2) else AV)(t)
                    o = gb + tile * SLOT + ks * 512
                    i, tk = frag(lambda r: [f"ds_read_b64_tr_b16 {vr(r,2)}, v{a} offset:{o}", f"ds_read_b64_tr_b16 {vr(r+2,2)}, v{a} offset:{o+256}"])
                    for qt in range(2):
                        d = vr(acc(s, t, qt), 4)
                        mf.append(mfma(d, vr(FR(i), 4), bfrag(qt, kk), d if kk else "0", need=[tk]))
                    if t == 0:
                        d = vr(acc9(s), 4)
                        mf.append(mfma(d, vr(FR(i), 4), ar(O9F(kk), 4), d if kk else "0", need=[tk]))
                    ring.used(i, len(mf) - 1); lasttok = tk
    out = schedule(mf, [ds, va, dm], verbose=OPT["verbose"], name="final")
    tail = []
    pk = 64 + 16
    e = ["s_nop 7"]
    for ee in range(4):
        qt, tp = ee >> 1, ee & 1
        for h in range(2):
            a0 = acc(1, 2 * tp + h, qt)
            for j in range(2): e.append(f"v_cvt_pk_bf16_f32 v{pk+4*ee+2*h+j}, v{a0+2*j}, v{a0+2*j+1}")
        e.append(f"buffer_store_dwordx4 {vr(pk+4*ee,4)}, v{VKV0}, {srd(SWS)}, s{sST(1)} offen offset:{ee*1024}" + cx.stflag)
    for j in range(2): e.append(f"v_cvt_pk_bf16_f32 v{T0+4+j}, v{acc9(1)+2*j}, v{acc9(1)+2*j+1}")
    e += [f"s_add_u32 s{sST9}, s{sST(1)}, s65", f"buffer_store_dwordx2 {vr(T0+4,2)}, v{VL4}, {srd(SWS)}, s{sST9} offen" + cx.stflag]
    return out, L("\n".join(e))

def prologue(cx, code_bytes):
    e = f"""
    s_cmp_ge_u32 s2, 256
    s_cbranch_scc0 L_go
    s_endpgm
    L_go:
    s_load_dwordx16 s[68:83], s[0:1], 0
    s_load_dwordx4 s[84:87], s[0:1], 64
    s_load_dwordx2 s[88:89], s[0:1], 96
    s_getpc_b64 s[4:5]
    v_lshrrev_b32 v1, 6, v0
    v_and_b32 v2, 63, v0
    v_readfirstlane_b32 s{sWAVE}, v1
    s_and_b32 s5, s5, 0xffff
    s_and_b32 s4, s4, 0xffffff00
    s_mov_b32 s6, {code_bytes}
    s_mov_b32 s7, 0x20000
    v_lshlrev_b32 v3, 7, v0
    buffer_load_dword v{VDUM}, v3, s[4:7], 0 offen
    s_and_b32 s3, s2, 7
    s_lshr_b32 s{sT}, s2, 3
    s_lshr_b32 s{sB}, s{sT}, 1
    s_and_b32 s{sHG}, s3, 3
    s_lshl_b32 s{sHG}, s{sHG}, 1
    s_and_b32 s{sT}, s{sT}, 1
    s_add_u32 s{sHG}, s{sHG}, s{sT}
    s_lshr_b32 s3, s3, 2
    s_lshl_b32 s{sPAIR}, s3, 4
    s_add_u32 s{sPAIR}, s{sPAIR}, s{sB}
    s_mul_i32 s{sWSL}, s{sWAVE}, {SLOT}
    v_lshlrev_b32 v{VKV0}, 4, v2
    v_add_u32 v{VKV1}, 4096, v{VKV0}
    s_waitcnt lgkmcnt(0)
    s_cmp_eq_u32 s3, 0
    s_cselect_b32 s68, s68, s78
    s_cselect_b32 s69, s69, s79
    s_cselect_b32 s70, s70, s80
    s_cselect_b32 s71, s71, s81
    s_cselect_b32 s72, s72, s82
    s_cselect_b32 s73, s73, s83
    s_cselect_b32 s74, s74, s84
    s_cselect_b32 s75, s75, s85
    s_cselect_b32 s76, s76, s86
    s_cselect_b32 s77, s77, s87
    s_mul_i32 s{sT}, s{sB}, 147456
    s_add_u32 s{SX}, s68, s{sT}
    s_addc_u32 s{SX+1}, s69, 0
    s_and_b32 s{SX+1}, s{SX+1}, 0xffff
    s_mov_b32 s{SX+2}, 147456
    s_mov_b32 s{SX+3}, 0x20000
    s_lshl_b32 s{sT}, s{sHG}, 10
    s_add_u32 s{SW}, s74, s{sT}
    s_addc_u32 s{SW+1}, s75, 0
    s_and_b32 s{SW+1}, s{SW+1}, 0xffff
    s_sub_u32 s{SW+2}, 4194304, s{sT}
    s_mov_b32 s{SW+3}, 0x20000
    v_lshrrev_b32 v4, 4, v2
    v_and_b32 v5, 15, v2
    v_lshlrev_b32 v6, 4, v5
    v_lshl_add_u32 v7, v4, 13, v6
    v_lshl_add_u32 v{VW}, v4, 16, v6
    s_lshl_b32 s65, s{sB}, 2
    s_add_u32 s65, s65, s{sWAVE}
    s_lshl_b32 s65, s65, 16
    v_lshrrev_b32 v8, 3, v2
    v_lshlrev_b32 v8, 13, v8
    v_and_b32 v9, 4, v2
    v_lshl_add_u32 v8, v9, 5, v8
    v_add_u32 v{VTOUCH}, s65, v8
    buffer_load_dword v{VDUM}, v{VTOUCH}, {srd(SW)}, 0 offen
    s_lshl_b32 s65, s{sWAVE}, 15
    """
    out = L(e)
    xt = []
    for c in range(4):
        tok = Tok("x"); xt.append(tok)
        out += L(f"s_add_u32 s{sT}, s65, {c*256}\ns_add_u32 m0, s{sWSL}, {POS[c]}")
        for b in range(8):
            if b == 4: out += L(f"s_add_u32 s{sT}, s{sT}, 4096\ns_add_u32 m0, m0, 4128")
            elif b: out += L("s_add_u32 m0, m0, 32")
            out.append(I("s_nop 0"))
            off = f" offset:{1024*(b&3)}" if b & 3 else ""
            out.append(I(f"buffer_load_dwordx4 v7, {srd(SX)}, s{sT} offen{off} lds", tok=tok))
        if c == 0:
            x9 = Tok("x9"); cx.x9tok = x9
            out += L(f"s_lshl_b32 s{sT}, s{sWAVE}, 12\ns_add_u32 s{sT}, s{sT}, {128*1024}\ns_mul_i32 s66, s{sWAVE}, {4*X9S}\ns_add_u32 m0, s66, {X9}")
            for b in range(4):
                if b: out += L("s_add_u32 m0, m0, 16")
                out.append(I("s_nop 0"))
                off = f" offset:{1024*b}" if b else ""
                out.append(I(f"buffer_load_dwordx4 v{VKV0}, {srd(SX)}, s{sT} offen{off} lds", tok=x9))
    e = f"""
    s_lshl_b32 s{sT}, s{sB}, 5
    s_lshl_b32 s65, s{sHG}, 2
    s_add_u32 s{sT}, s{sT}, s65
    s_lshl_b32 s{sT}, s{sT}, 17
    s_add_u32 s{SK}, s70, s{sT}
    s_addc_u32 s{SK+1}, s71, 0
    s_and_b32 s{SK+1}, s{SK+1}, 0xffff
    s_mov_b32 s{SK+2}, 524288
    s_mov_b32 s{SK+3}, 0x20000
    s_add_u32 s{SV}, s72, s{sT}
    s_addc_u32 s{SV+1}, s73, 0
    s_and_b32 s{SV+1}, s{SV+1}, 0xffff
    s_mov_b32 s{SV+2}, 524288
    s_mov_b32 s{SV+3}, 0x20000
    s_lshl_b32 s{sT}, s{sHG}, 19
    s_add_u32 s{SWO}, s76, s{sT}
    s_addc_u32 s{SWO+1}, s77, 0
    s_and_b32 s{SWO+1}, s{SWO+1}, 0xffff
    s_mov_b32 s{SWO+2}, 524288
    s_mov_b32 s{SWO+3}, 0x20000
    s_mov_b32 s{SWO2}, s{SWO}
    s_mov_b32 s{SWO2+1}, s{SWO+1}
    s_mov_b32 s{SWO2+2}, 524288
    s_mov_b32 s{SWO2+3}, 0x20000
    s_mov_b32 s{SWS}, s88
    s_and_b32 s{SWS+1}, s89, 0xffff
    s_mov_b32 s{SWS+2}, {PART_BYTES}
    s_mov_b32 s{SWS+3}, 0x20000
    s_mov_b32 s{sR}, 0
    s_mov_b32 s{sRETRY}, 0
    s_lshl_b32 s{sKB}, s{sWAVE}, 13
    s_lshl_b32 s{sWG(0)}, s{sWAVE}, 18
    s_add_u32 s{sWG(1)}, s{sWG(0)}, {128*8192}
    s_add_u32 s{sWG(2)}, s{sWG(0)}, {256*8192}
    s_add_u32 s{sWG(3)}, s{sWG(0)}, {384*8192}
    s_mov_b32 s{sWBS}, 8192
    s_mov_b32 s{sWM}, 1088
    s_mov_b32 s{sWM4}, 1096
    s_mov_b32 s{sC}, {CSCALE:#x}
    s_mov_b32 s{sLO}, 0x33800000
    s_mov_b32 s{sHI}, 0x53800000
    s_mov_b32 s{sNAN}, 0x7fc00000
    s_add_u32 s{sT}, s{sHG}, 1
    s_and_b32 s{sT}, s{sT}, 7
    s_lshl_b32 s{sT}, s{sT}, 7
    s_lshl_b32 s65, s{sWAVE}, 16
    s_add_u32 s{sSL(0)}, s{sT}, s65
    s_add_u32 s{sT}, s{sHG}, 2
    s_and_b32 s{sT}, s{sT}, 7
    s_lshl_b32 s{sT}, s{sT}, 7
    s_add_u32 s{sSL(1)}, s{sT}, s65
    v_and_b32 v8, 7, v2
    v_mul_u32_u24 v8, 1056, v8
    v_bfe_u32 v9, v2, 3, 1
    v_lshl_add_u32 v8, v9, 8, v8
    v_lshl_add_u32 v10, v4, 3, v8
    v_add_u32 v10, s{sWSL}, v10
    v_lshl_add_u32 v8, v4, 4, v8
    v_bfe_u32 v9, v2, 2, 3
    v_mul_u32_u24 v11, 1056, v9
    v_lshrrev_b32 v12, 5, v2
    v_lshl_add_u32 v11, v12, 8, v11
    v_and_b32 v13, 3, v2
    v_lshl_add_u32 v11, v13, 3, v11
    v_add_u32 v11, {POS[1]}, v11
    v_mul_u32_u24 v14, 1088, v9
    v_lshrrev_b32 v15, 2, v9
    v_lshl_add_u32 v14, v15, 3, v14
    v_lshl_add_u32 v14, v12, 8, v14
    v_lshl_add_u32 v{AWQ(0)}, v13, 4, v14
    v_add_u32 v{AWQ(1)}, {POS[1]}, v{AWQ(0)}
    s_lshl_b32 s{sT}, s{sWAVE}, 6
    v_add_u32 v{AWQ9(0)}, s{sT}, v{AWQ(0)}
    v_add_u32 v{AWQ9(1)}, s{sT}, v{AWQ(1)}
    v_mul_u32_u24 v14, {X9S}, v5
    v_lshl_add_u32 v14, v4, 3, v14
    v_add_u32 v{AX9}, {X9}, v14
    s_lshl_b32 s{sT}, s{sWAVE}, 10
    s_add_u32 s{sT}, s{sT}, {Q9A}
    v_add_u32 v{VL16}, s{sT}, v{VKV0}
    v_add_u32 v{T0}, {Q9A}, v{VKV0}
    s_lshl_b32 s{sT}, s{sWAVE}, 13
    s_add_u32 s{sT}, s{sT}, {POS[2]}
    v_add_u32 v{T0+1}, s{sT}, v{VKV0}
    s_lshl_b32 s{sT}, s{sWAVE}, 11
    s_add_u32 s{sT}, s{sT}, {POS[2]}
    v_add_u32 v{T0+5}, s{sT}, v{VKV0}
    v_lshlrev_b32 v14, 2, v2
    v_add_u32 v{T0+6}, {L9A}, v14
    s_lshl_b32 s{sT}, s{sWAVE}, 8
    v_add_u32 v{VL4}, s{sT}, v{T0+6}
    """
    out += L(e)
    for j in range(4):
        out += L(f"s_add_u32 s{sT}, s{sWAVE}, {j}\ns_and_b32 s{sT}, s{sT}, 3\ns_mul_i32 s{sT}, s{sT}, {SLOT}\nv_add_u32 v{AK(j)}, s{sT}, v8\nv_add_u32 v{AV(j)}, s{sT}, v11")
    for j in range(4): out += L(f"v_mov_b32 v{ONES+j}, 0x3f803f80")
    for j in range(12): out += L(f"v_mov_b32 v{NEGM(0)+j}, 0")
    out += L(f"v_add_u32 v16, {POS[1]}, v10")
    for c in range(4):
        out.append(I("WAITV", need=[xt[c]]))
        a = 10 if c in (0, 2) else 16; gb = GRP if c >= 2 else 0
        for qt in range(2):
            for k in range(4):
                for tau in range(2):
                    out.append(I(f"ds_read_b64 {ar(XF(qt,4*c+k)+2*tau,2)}, v{a} offset:{gb+qt*512+k*64+tau*32}"))
        if c < 2:
            out.append(I("s_waitcnt lgkmcnt(0)"))
            items, tok = dma_w(c, c); cx.w0[c] = tok
            for it in items:
                if it.kind == "vmem": out.append(I("s_nop 0"))
                out.append(it)
    out.append(I("s_waitcnt lgkmcnt(0)"))
    return out

def final_prologue(cx):
    e = [f"s_lshl_b32 s{sT}, s{sWAVE}, 10", f"s_add_u32 s{sT}, s{sT}, {X9}", f"v_add_u32 v{T0}, s{sT}, v{VKV0}"]
    for h in range(4): e.append(f"ds_write_b128 v{T0}, {vr(O9S(h),4)} offset:{h*4096}")
    e += [f"v_lshrrev_b32 v{T0+1}, 4, v{VKV0}", f"v_bfe_u32 v{T0+2}, v{T0+1}, 2, 3", f"v_mul_u32_u24 v{T0+2}, 1056, v{T0+2}",
          f"v_lshrrev_b32 v{T0+3}, 5, v{T0+1}", f"v_lshl_add_u32 v{T0+2}, v{T0+3}, 7, v{T0+2}", f"v_and_b32 v{T0+3}, 3, v{T0+1}",
          f"v_lshl_add_u32 v{T0+2}, v{T0+3}, 3, v{T0+2}", f"v_lshlrev_b32 v{VL4}, 3, v{T0+1}"]
    for t in range(4):
        e += [f"s_add_u32 s{sT}, s{sWAVE}, {t}", f"s_and_b32 s{sT}, s{sT}, 3", f"s_lshl_b32 s{sT}, s{sT}, 5",
              f"v_add_u32 v{AK(t)}, s{sT}, v{T0+2}", f"v_add_u32 v{AV(t)}, {POS[1]}, v{AK(t)}"]
    e += [f"v_add_u32 v{T0}, {X9}, v{VKV0}", "s_waitcnt lgkmcnt(0)", "s_barrier"]
    out = L("\n".join(e))
    items, tok = dma_w(2, 2); cx.fw2 = tok
    for n, it in enumerate(items):
        if it.kind == "vmem": out.append(I("s_nop 0"))
        out.append(it)
    for kk in range(16): out.append(I(f"ds_read_b128 {ar(O9F(kk),4)}, v{T0} offset:{kk*1024}"))
    e = f"""
    s_mov_b32 s{sIT}, 0
    s_mov_b32 s{sST(1)}, 0x40000000
    s_lshl_b32 s65, s{sWAVE}, 9
    s_lshl_b32 s66, s{sWAVE}, 12
    s_sub_u32 s65, s65, s66
    s_add_u32 s65, s65, 16384
    s_lshl_b32 s67, s{sPAIR}, 6
    s_add_u32 s67, s67, s{sHG}
    s_mul_i32 s67, s67, {PART}
    s_add_u32 s67, s67, s66
    s_waitcnt lgkmcnt(0)
    """
    return out + L(e)

def final_iter_head():
    e = []
    e += [f"s_lshl_b32 s68, s{sIT}, 1", f"s_add_u32 s68, s68, s{sHG}", f"s_lshl_b32 s69, s{sWAVE}, 16"]
    for i in range(3):
        e += [f"s_add_u32 s{sT}, s68, {2+i}", f"s_and_b32 s{sT}, s{sT}, 7", f"s_lshl_b32 s{sT}, s{sT}, 7", f"s_add_u32 s{sSL(i)}, s{sT}, s69"]
    e += [f"s_add_u32 s{sT}, s68, 1", f"s_and_b32 s{sT}, s{sT}, 7", f"s_mul_i32 s{sT}, s{sT}, {8*PART}", f"s_add_u32 s{sST(0)}, s{sT}, s67",
          f"s_cmp_eq_u32 s{sIT}, 3", f"s_cselect_b32 s{SWO2+2}, 0, s{SWO2+2}"]
    return L("\n".join(e))

def final_iter_tail():
    e = [f"s_add_u32 s{sT}, s68, 2", f"s_and_b32 s{sT}, s{sT}, 7", f"s_mul_i32 s{sT}, s{sT}, {8*PART}", f"s_add_u32 s{sST(1)}, s{sT}, s67",
         f"s_add_u32 s{sIT}, s{sIT}, 1", f"s_cmp_lt_u32 s{sIT}, 4", "s_cbranch_scc1 L_fin"]
    return L("\n".join(e))

def build():
    cx = Ctx(); cx.kv = {}; cx.wnext = {}; cx.w0 = {}; cx.stflag = OPT.get("stflag", "")
    pro = prologue(cx, OPT.get("code_bytes", 32768))
    class Either(Tok):
        pass
    w0, w1 = Tok("W0", 8), Tok("W1", 8)
    for ins in pro:
        if ins.tok is cx.w0[0]: ins.tok = w0
        elif ins.tok is cx.w0[1]: ins.tok = w1
    cx.w = {0: w0, 1: w1}
    cx.wl = {}; cx.wl_items = {}
    for c in (2, 3):
        cx.wl_items[c], cx.wl[c] = dma_w(c, c)
    head = L("L_head:")
    head += qproj(cx)
    head += L("L_attn:") + next_w_params()
    att = attention(cx)
    for ins in att:
        if ins.tok is cx.wnext[0]: ins.tok = w0
        elif ins.tok is cx.wnext[1]: ins.tok = w1
    head += att + o_epilogue(cx)
    head += L(f"""
    s_add_u32 s{sKB}, s{sKB}, 131072
    s_add_u32 s{sR}, s{sR}, 1
    s_cmp_eq_u32 s{sR}, 1
    s_cbranch_scc1 L_stash0
    s_cmp_eq_u32 s{sR}, 2
    s_cbranch_scc1 L_stash1
    s_cmp_eq_u32 s{sR}, 3
    s_cbranch_scc1 L_stash2
    """)
    fpro = final_prologue(cx)
    g0, g1, g2, g3 = w0, w1, cx.fw2, Tok("g3", 8)
    cx.fitems = {}
    for g, (sr, sl, m, pos, tk) in enumerate([(SWO, sSL(0), 1, 3, g3), (SWO2, sSL(1), 0, 0, g0), (SWO2, sSL(1), 1, 1, g1), (SWO2, sSL(2), 0, 2, g2)]):
        items, tok = dma_wo(sr, sl, m, pos)
        for it in items:
            if it.tok is tok: it.tok = tk
        cx.fitems[g] = (items, tk)
    cx.fw = {0: g0, 1: g1, 2: g2, 3: g3}; cx.flast = None
    fbody, ftail = final_body(cx)
    floop = L("L_fin:") + final_iter_head() + L("s_waitcnt lgkmcnt(0)") + fbody + final_iter_tail()
    end = ftail + L("s_endpgm")
    side = stash_blocks() + retry_block()
    st0 = [i for i in stash_blocks()[:38]]
    trace = pro + (head + st0) * 3 + head + fpro + floop * 4 + end
    resolve_waits(trace)
    probs = check_hazards(pro + head + st0 + head + fpro + floop + floop + end) + check_hazards(side)
    for p in probs: print("HAZARD", p)
    assert not probs
    main = pro + head + fpro + floop + end + side
    return main

def reduce_kernel():
    e = f"""
    s_cmp_ge_u32 s2, 256
    s_cbranch_scc0 R_go
    s_endpgm
    R_go:
    s_load_dwordx2 s[4:5], s[0:1], 80
    s_load_dwordx2 s[6:7], s[0:1], 96
    v_lshrrev_b32 v1, 6, v0
    v_and_b32 v2, 63, v0
    v_readfirstlane_b32 s16, v1
    v_lshlrev_b32 v3, 4, v2
    v_lshlrev_b32 v4, 3, v2
    s_mul_i32 s17, s2, {8*PART}
    s_lshl_b32 s18, s16, 12
    s_add_u32 s18, s18, s17
    s_lshl_b32 s19, s16, 9
    s_add_u32 s19, s19, s17
    s_add_u32 s19, s19, 16384
    s_waitcnt lgkmcnt(0)
    s_mov_b32 s8, s6
    s_and_b32 s9, s7, 0xffff
    s_mov_b32 s10, {PART_BYTES}
    s_mov_b32 s11, 0x20000
    s_mov_b32 s12, s4
    s_and_b32 s13, s5, 0xffff
    s_mov_b32 s14, {16*144*1024*2}
    s_mov_b32 s15, 0x20000
    """
    o = [x.strip() for x in e.strip().split("\n")]
    for src in range(8):
        for ee in range(4): o.append(f"buffer_load_dwordx4 v[{32+src*18+4*ee}:{35+src*18+4*ee}], v3, s[8:11], s18 offen offset:{ee*1024}")
        o.append(f"buffer_load_dwordx2 v[{48+src*18}:{49+src*18}], v4, s[8:11], s19 offen")
        o += [f"s_add_u32 s18, s18, {PART}", f"s_add_u32 s19, s19, {PART}"]
    o += ["s_lshr_b32 s20, s2, 3", "s_and_b32 s21, s20, 15", "s_lshr_b32 s22, s20, 4", "s_and_b32 s23, s2, 7",
          f"s_mul_i32 s21, s21, {144*2048}", "s_lshl_b32 s22, s22, 10", "s_lshl_b32 s23, s23, 7", "s_add_u32 s21, s21, s22", "s_add_u32 s21, s21, s23",
          "v_and_b32 v5, 15, v2", "v_lshrrev_b32 v6, 4, v2", "v_lshlrev_b32 v5, 11, v5", "v_lshl_add_u32 v5, v6, 3, v5",
          "s_lshl_b32 s24, s16, 16", "s_add_u32 s24, s24, s21", "s_mov_b32 s30, 0xffff0000"]
    for t in range(4):
        o += [f"s_add_u32 s25, s16, {t}", "s_and_b32 s25, s25, 3", "s_lshl_b32 s25, s25, 5", f"v_add_u32 v{8+t}, s25, v5"]
    for src in range(8):
        o.append(f"s_waitcnt vmcnt({5*(7-src)})")
        for j in range(18):
            r = 32 + src * 18 + j; lo, hi = 180 + 2 * j, 181 + 2 * j
            if src == 0:
                o += [f"v_lshlrev_b32 v{lo}, 16, v{r}", f"v_and_b32 v{hi}, s30, v{r}"]
            else:
                o += [f"v_lshlrev_b32 v12, 16, v{r}", f"v_and_b32 v13, s30, v{r}", f"v_add_f32 v{lo}, v{lo}, v12", f"v_add_f32 v{hi}, v{hi}, v13"]
    for j in range(18): o.append(f"v_cvt_pk_bf16_f32 v{32+j}, v{180+2*j}, v{181+2*j}")
    o += [f"s_add_u32 s26, s24, {16*2048}", f"s_add_u32 s27, s21, {128*2048}"]
    for ee in range(4):
        qt, tp = ee >> 1, ee & 1
        for h in range(2):
            o.append(f"buffer_store_dwordx2 v[{32+4*ee+2*h}:{33+4*ee+2*h}], v{8+2*tp+h}, s[12:15], s{24 if qt == 0 else 26} offen")
    o.append(f"buffer_store_dwordx2 v[48:49], v8, s[12:15], s27 offen")
    o.append("s_endpgm")
    return o

def desc(name, vgpr, accum, sgpr=102):
    return f"""
.section .rodata,"a"
.p2align 6
.amdhsa_kernel {name}
  .amdhsa_next_free_vgpr {vgpr}
  .amdhsa_next_free_sgpr {sgpr}
  .amdhsa_accum_offset {accum}
  .amdhsa_group_segment_fixed_size 0
  .amdhsa_kernarg_size 104
  .amdhsa_user_sgpr_count 2
  .amdhsa_user_sgpr_kernarg_segment_ptr 1
  .amdhsa_system_sgpr_workgroup_id_x 1
.end_amdhsa_kernel
.text
"""

def emit(path):
    main = build()
    hdr = open("cdna_kernels/" + NAME + ".s.ref").read().split("; Override launch")[0]
    k1, k2 = NAME + "_kernel", "reduce_partials_kernel"
    t = hdr
    t += f"; @launch kernel={k1} grid=(256,1,1) block=(256,1,1) lds={LDS_BYTES}\n"
    t += f"; @launch kernel={k2} grid=(256,1,1) block=(256,1,1) lds=0\n"
    t += '.amdgcn_target "amdgcn-amd-amdhsa--gfx950"\n.text\n'
    t += f".globl {k1}\n.p2align 8\n.type {k1},@function\n{k1}:\n"
    for i in main:
        if i.text: t += (i.text if i.kind == "label" else "  " + i.text) + "\n"
    t += f".globl {k2}\n.p2align 8\n.type {k2},@function\n{k2}:\n"
    for x in reduce_kernel(): t += (x if x.endswith(":") else "  " + x) + "\n"
    t += desc(k1, 512, 256) + desc(k2, 216, 216, 40)
    open(path, "w").write(t)

if __name__ == "__main__":
    for a in sys.argv[2:]:
        k, v = a.split("="); OPT[k] = eval(v)
    emit(sys.argv[1] if len(sys.argv) > 1 else "cdna_kernels/" + NAME + ".s")
```
